```python
import torch

def _softmax(x, axis=-1):
    return torch.softmax(x, dim=axis)
def _gelu(x):
    return torch.nn.functional.gelu(x, approximate="tanh")
def _silu(x):
    return torch.nn.functional.silu(x)
def _sigmoid(x):
    return torch.sigmoid(x)
def _layernorm(x, axis=-1, eps=1e-5):
    m = x.mean(dim=axis, keepdim=True)
    v = x.var(dim=axis, keepdim=True, unbiased=False)
    return (x - m) / torch.sqrt(v + eps)
def _scatter_add(tgt, idx, src, axis=0):
    return tgt.clone().index_add_(axis, idx, src)
def _segment_sum(src, seg, n):
    out = torch.zeros((n,) + src.shape[1:], dtype=src.dtype)
    return out.index_add_(0, seg, src)
def _pad(x, pw):
    flat = tuple(v for pair in reversed(pw) for v in pair)
    return torch.nn.functional.pad(x, flat)

kernel_name = 'gated_mix__linear_kernel_hedgehog__mixer_channel_mlp__prompt'

def setup_inputs():

    _w = (lambda a: (lambda t: t.to(torch.bfloat16) if t.is_floating_point() else t)(torch.as_tensor(a)))
    def _A_setup():
        B, S, D, H = 1, 2048, 512, 32
        Dh = D // H
        return {
            "x": _w((lambda *s: torch.randn(*s, dtype=torch.bfloat16) * 0.05)(B, S, D)),
            "wqkv": _w((lambda *s: torch.randn(*s, dtype=torch.bfloat16) * 0.8)(D, 3 * D)),
            "w_phi": _w((lambda *s: torch.randn(*s, dtype=torch.bfloat16) * 0.8)(H, Dh, Dh) * (Dh ** -0.5)),
            "wo": _w((lambda *s: torch.randn(*s, dtype=torch.bfloat16) * 0.1)(D, D)),
        }
    _A_in = _A_setup()

    def _B_setup():
        B, S, D, F = 1, 2048, 512, 1376
        return {
            "x": _w((lambda *s: torch.randn(*s, dtype=torch.bfloat16) * 0.05)(B, S, D)),
            "w1": _w((lambda *s: torch.randn(*s, dtype=torch.bfloat16) * 0.8)(D, F) * (D ** -0.5)),
            "b1": _w((lambda *s: torch.randn(*s, dtype=torch.bfloat16) * 0.4)(F)),
            "w2": _w((lambda *s: torch.randn(*s, dtype=torch.bfloat16) * 0.05)(F, D) * (F ** -0.5)),
            "b2": _w((lambda *s: torch.randn(*s, dtype=torch.bfloat16) * 0.05)(D)),
        }
    _B_in = _B_setup()

    return {
        "A_x": _A_in["x"],
        "A_wqkv": _A_in["wqkv"],
        "A_w_phi": _A_in["w_phi"],
        "A_wo": _A_in["wo"],
        "B_x": _B_in["x"],
        "B_w1": _B_in["w1"],
        "B_b1": _B_in["b1"],
        "B_w2": _B_in["w2"],
        "B_b2": _B_in["b2"],
        "gate_w": _w((lambda *s: torch.randn(*s, dtype=torch.bfloat16) * 0.05)(512) * 16.0),
    }

def reference(A_x, A_wqkv, A_w_phi, A_wo, B_x, B_w1, B_b1, B_w2, B_b2, gate_w):
    def _A_ref(x, wqkv, w_phi, wo):
        B, S, D = x.shape
        H = 32; Dh = D // H
        qkv = (lambda x, *d: x.permute(*d))((x @ wqkv).reshape(B, S, 3, H, Dh), 2, 0, 3, 1, 4)
        q, k, v = qkv[0], qkv[1], qkv[2]
        pq = torch.einsum("bhsd,hdf->bhsf", q, w_phi)
        pk = torch.einsum("bhsd,hdf->bhsf", k, w_phi)
        phi_q = torch.concatenate([_softmax(pq, axis=-1), _softmax(-pq, axis=-1)], axis=-1)
        phi_k = torch.concatenate([_softmax(pk, axis=-1), _softmax(-pk, axis=-1)], axis=-1)
        kv = torch.einsum("bhsf,bhsd->bhfd", phi_k, v)
        z  = torch.einsum("bhsf->bhf", phi_k)
        num = torch.einsum("bhqf,bhfd->bhqd", phi_q, kv)
        den = torch.einsum("bhqf,bhf->bhq", phi_q, z)[..., None] + 1e-6
        o = num / den
        return (lambda x, *d: x.permute(*d))(o, 0, 2, 1, 3).reshape(B, S, D) @ wo

    def _B_ref(x, w1, b1, w2, b2):
        y = _layernorm(x, axis=-1)
        h = _gelu(torch.einsum("bsd,df->bsf", y, w1) + b1)
        return torch.einsum("bsf,fd->bsd", h, w2) + b2

    x = A_x
    g = _sigmoid((x * gate_w).sum(-1, keepdims=True))
    a = _A_ref(x, A_wqkv, A_w_phi, A_wo)
    b = _B_ref(x, B_w1, B_b1, B_w2, B_b2)
    return g * a + (1 - g) * b
```

```python
import re

TRANS = ("v_exp_f32", "v_log_f32", "v_rcp_f32", "v_rsq_f32", "v_sqrt_f32", "v_sin_f32", "v_cos_f32")

def parse_regs(tok):
    tok = tok.strip()
    tok = tok.lstrip("-")
    m = re.match(r"abs\((.*)\)", tok)
    if m: tok = m.group(1)
    tok = tok.strip("|")
    m = re.match(r"^([vsa])\[(\d+):(\d+)\]$", tok)
    if m: return {(m.group(1), i) for i in range(int(m.group(2)), int(m.group(3)) + 1)}
    m = re.match(r"^([vsa])(\d+)$", tok)
    if m: return {(m.group(1), int(m.group(2)))}
    if tok == "vcc": return {("s", 106), ("s", 107)}
    if tok == "exec": return {("s", 126), ("s", 127)}
    if tok == "m0": return {("s", 124)}
    return set()

class Ins:
    __slots__ = ("text", "op", "ops", "rd", "wr", "cls", "passes", "srcc", "mods")
    def __init__(self, text):
        self.text = text
        t = text.split(";")[0].strip()
        parts = t.split(None, 1)
        self.op = parts[0]
        rest = parts[1] if len(parts) > 1 else ""
        ops = []; depth = 0; cur = ""
        for ch in rest:
            if ch == "[": depth += 1
            if ch == "]": depth -= 1
            if ch == "," and depth == 0: ops.append(cur.strip()); cur = ""
            else: cur += ch
        if cur.strip(): ops.append(cur.strip())
        mods = ""
        if ops:
            sp = ops[-1].split(None, 1)
            ops[-1] = sp[0]
            if len(sp) > 1: mods = sp[1]
        self.ops = ops; self.mods = mods
        op = self.op
        self.rd = set(); self.wr = set(); self.passes = 0; self.srcc = set()
        R = [parse_regs(o) for o in ops]
        if op.startswith("v_mfma"):
            self.cls = "mfma"
            self.passes = 8 if "32x32" in op else 4
            self.wr = R[0]; self.rd = R[1] | R[2] | R[3]; self.srcc = R[3]
        elif op.startswith("v_permlane") and "swap" in op:
            self.cls = "perm"; self.wr = R[0] | R[1]; self.rd = R[0] | R[1]
        elif op.startswith("v_readfirstlane") or op.startswith("v_readlane"):
            self.cls = "rdlane"; self.wr = R[0]; self.rd = set().union(*R[1:])
        elif op.startswith("v_cmp"):
            self.cls = "valu"; self.wr = R[0]; self.rd = set().union(*R[1:])
        elif op.startswith("v_"):
            self.cls = "trans" if op.split("_e")[0] in TRANS or op in TRANS else "valu"
            self.wr = R[0]; self.rd = set().union(*R[1:]) if len(R) > 1 else set()
            if op.startswith(("v_fmac", "v_dot2c", "v_pk_fmac")): self.rd |= R[0]
            if op.startswith(("v_add_co", "v_addc_co", "v_sub_co")):
                self.wr |= R[1]; self.rd = set().union(*R[2:])
            if "dpp" in op or "row_" in mods or "quad_perm" in mods: self.cls = "dpp"; self.rd |= R[0]
            if op.startswith("v_cndmask") and len(ops) == 3: self.rd |= {("s", 106), ("s", 107)}
        elif op.startswith("ds_"):
            self.cls = "ds"
            if op.startswith("ds_read") or op.startswith("ds_bpermute") or op.startswith("ds_swizzle"):
                self.wr = R[0]; self.rd = set().union(*R[1:])
            else:
                self.rd = set().union(*R)
        elif op.startswith("buffer_") or op.startswith("global_"):
            self.cls = "vmem"
            if "lds" in mods.split():
                self.rd = set().union(*R) | {("s", 124)}; self.cls = "dma"
            elif "load" in op:
                self.wr = R[0]; self.rd = set().union(*R[1:])
                if "d16" in op: self.rd |= R[0]
            elif "atomic" in op and "sc0" in mods.split():
                self.wr = R[0]; self.rd = set().union(*R)
            else:
                self.rd = set().union(*R)
                self.cls = "store"
        elif op.startswith("s_"):
            self.cls = "salu"
            if op in ("s_nop", "s_waitcnt", "s_barrier", "s_branch", "s_endpgm", "s_setprio", "s_sleep") or op.startswith("s_cbranch"):
                pass
            elif op.startswith("s_cmp"):
                self.rd = set().union(*R)
            else:
                self.wr = R[0]; self.rd = set().union(*R[1:]) if len(R) > 1 else set()
                if "saveexec" in op: self.wr |= {("s", 126), ("s", 127)}
        else:
            self.cls = "other"
    def states(self):
        if self.op == "s_nop": return int(self.ops[0], 0) + 1
        return 1

def need(p, c):
    n = 0
    pv = p.wr;
    valu_p = p.cls in ("valu", "trans", "perm", "dpp", "rdlane")
    if p.cls == "mfma":
        big = p.passes == 8
        if c.cls == "mfma":
            if pv & (c.rd - c.srcc) and (pv & (parse_regs(c.ops[1]) | parse_regs(c.ops[2]))): n = max(n, 12 if big else 8)
            if pv & c.srcc:
                if not (pv == c.srcc and p.passes == c.passes): n = max(n, 10 if big else 6)
        else:
            if pv & (c.rd | c.wr): n = max(n, 12 if big else 8)
        if c.cls in ("valu", "trans", "perm", "dpp") and (p.srcc & c.wr): n = max(n, 7 if big else 3)
    if valu_p:
        vw = {r for r in pv if r[0] in "va"}
        sw = {r for r in pv if r[0] == "s"}
        if c.cls == "mfma" and vw & c.rd: n = max(n, 2)
        if c.cls == "perm" and vw & c.rd: n = max(n, 2)
        if c.cls == "dpp" and vw & c.rd: n = max(n, 2)
        if c.cls == "rdlane" and vw & c.rd: n = max(n, 1)
        if p.cls == "trans" and vw & c.rd and c.cls != "trans": n = max(n, 1)
        if p.cls == "trans" and vw & c.rd and c.cls == "trans": n = max(n, 1)
        if sw:
            if c.cls in ("valu", "trans", "perm", "dpp", "mfma") and sw & c.rd: n = max(n, 2)
            if c.cls == "rdlane" and sw & c.rd: n = max(n, 4)
            if c.cls in ("vmem", "store", "dma") and sw & c.rd: n = max(n, 5)
            if c.cls == "salu" and sw & c.rd: n = max(n, 3)
    if p.cls == "salu" and ("s", 124) in p.wr and c.cls == "dma": n = max(n, 1)
    if p.cls == "salu" and (p.wr & {("s", 126), ("s", 127)}) and c.cls == "mfma": n = max(n, 4)
    if p.cls == "store" and ("x4" in p.op or "x3" in p.op):
        data = parse_regs(p.ops[0]) if p.op.startswith("buffer_") else parse_regs(p.ops[1])
        if data & c.wr: n = max(n, 2)
    return n

class Asm:
    def __init__(self):
        self.items = []
    def raw(self, s): self.items.append(s)
    def label(self, s): self.items.append(s + ":")
    def __call__(self, text):
        for line in text.strip().split("\n"):
            line = line.strip()
            if not line or line.startswith(";"): continue
            if line.endswith(":"): self.items.append(line)
            else: self.items.append(Ins(line))
    def finish(self):
        out = []; hist = []
        nn = 0
        for it in self.items:
            if isinstance(it, str):
                out.append(it)
                continue
            req = 0; dist = 0
            for p in reversed(hist):
                if dist >= 20: break
                k = need(p, it)
                if k > dist: req = max(req, k - dist)
                dist += p.states()
            while req > 0:
                k = min(req, 16)
                nop = Ins(f"s_nop {k-1}"); out.append("    " + nop.text); hist.append(nop); req -= k; nn += 1
            out.append("    " + it.text); hist.append(it)
            if len(hist) > 64: hist = hist[-40:]
        self.nnops = nn
        return "\n".join(out) + "\n"

class RegAlloc:
    def __init__(self, kind, start, limit):
        self.kind = kind; self.next = start; self.limit = limit; self.hi = start
    def alloc(self, n=1, align=1):
        a = (self.next + align - 1) // align * align
        self.next = a + n
        assert self.next <= self.limit, f"out of {self.kind} regs"
        self.hi = max(self.hi, self.next)
        return a
    def mark(self): return self.next
    def release(self, m): self.next = m

def vr(b, n=1):
    return f"v{b}" if n == 1 else f"v[{b}:{b+n-1}]"
def sr(b, n=1):
    return f"s{b}" if n == 1 else f"s[{b}:{b+n-1}]"
```

```python
from asmlib import *

WS_H32 = 0
WS_H16 = 0x400000
WS_PQ  = 0x600000
WS_KVP = 0xA00000
WS_ZP  = 0xC00000
WS_G   = 0xC40000
WS_KVF = 0xC50000
WS_ZF  = 0xC60000
NCH = 29
LOG2E = 1.4426950408889634

def f32hex(x):
    import struct
    return "0x%08x" % struct.unpack("<I", struct.pack("<f", x))[0]

def interleave(streams):
    out = []
    streams = [list(s) for s in streams]
    while any(streams):
        for s in streams:
            if s: out.append(s.pop(0))
    return out

def xsum_pair(a, b, t1, t2, op):
    return [
        f"v_permlane32_swap_b32 v{a}, v{b}",
        f"{op} v{t1}, v{a}, v{b}",
        f"v_mov_b32 v{t2}, v{t1}",
        f"v_permlane16_swap_b32 v{t1}, v{t2}",
        f"{op} v{a}, v{t1}, v{t2}",
        f"v_mov_b32 v{b}, v{a}",
        f"v_permlane32_swap_b32 v{a}, v{b}",
    ]

def xsum_one(a, t1, op):
    return [
        f"v_mov_b32 v{t1}, v{a}",
        f"v_permlane32_swap_b32 v{a}, v{t1}",
        f"{op} v{a}, v{a}, v{t1}",
        f"v_mov_b32 v{t1}, v{a}",
        f"v_permlane16_swap_b32 v{a}, v{t1}",
        f"{op} v{a}, v{a}, v{t1}",
    ]

def softmax_tile(x, tmp, out, sL):
    m = tmp; n = tmp + 1; t1 = tmp + 2; t2 = tmp + 3; ep = tmp + 4; em = tmp + 8
    I = []
    I.append(f"v_max3_f32 v{m}, v{x}, v{x+1}, v{x+2}")
    I.append(f"v_max3_f32 v{n}, -v{x}, -v{x+1}, -v{x+2}")
    I.append(f"v_max_f32 v{m}, v{m}, v{x+3}")
    I.append(f"v_max_f32_e64 v{n}, v{n}, -v{x+3}")
    I += xsum_pair(m, n, t1, t2, "v_max_f32")
    I.append(f"v_pk_mul_f32 v[{m}:{n}], v[{m}:{n}], s[{sL}:{sL+1}]")
    for h in (0, 2):
        I.append(f"v_pk_fma_f32 v[{ep+h}:{ep+h+1}], v[{x+h}:{x+h+1}], s[{sL}:{sL+1}], v[{m}:{n}] op_sel_hi:[1,1,0] neg_lo:[0,0,1] neg_hi:[0,0,1]")
    for h in (0, 2):
        I.append(f"v_pk_fma_f32 v[{em+h}:{em+h+1}], v[{x+h}:{x+h+1}], s[{sL}:{sL+1}], v[{m}:{n}] op_sel:[0,0,1] op_sel_hi:[1,1,1] neg_lo:[0,1,1] neg_hi:[0,1,1]")
    for h in range(8):
        I.append(f"v_exp_f32 v{ep+h}, v{ep+h}")
    I.append(f"v_pk_add_f32 v[{t1}:{t2}], v[{ep}:{ep+1}], v[{ep+2}:{ep+3}]")
    I.append(f"v_add_f32 v{m}, v{t1}, v{t2}")
    I.append(f"v_pk_add_f32 v[{t1}:{t2}], v[{em}:{em+1}], v[{em+2}:{em+3}]")
    I.append(f"v_add_f32 v{n}, v{t1}, v{t2}")
    I += xsum_pair(m, n, t1, t2, "v_add_f32")
    I.append(f"v_rcp_f32 v{m}, v{m}")
    I.append(f"v_rcp_f32 v{n}, v{n}")
    for h in (0, 2):
        I.append(f"v_pk_mul_f32 v[{ep+h}:{ep+h+1}], v[{ep+h}:{ep+h+1}], v[{m}:{n}] op_sel_hi:[1,0]")
    for h in (0, 2):
        I.append(f"v_pk_mul_f32 v[{em+h}:{em+h+1}], v[{em+h}:{em+h+1}], v[{m}:{n}] op_sel:[0,1] op_sel_hi:[1,1]")
    I.append(f"v_cvt_pk_bf16_f32 v{out}, v{ep}, v{ep+1}")
    I.append(f"v_cvt_pk_bf16_f32 v{out+1}, v{ep+2}, v{ep+3}")
    I.append(f"v_cvt_pk_bf16_f32 v{out+2}, v{em}, v{em+1}")
    I.append(f"v_cvt_pk_bf16_f32 v{out+3}, v{em+2}, v{em+3}")
    return I

def gen_k1(A, name):
    A.raw(f".globl {name}\n.p2align 8\n.type {name},@function")
    A.label(name)
    A(f"""
    s_cmp_ge_u32 s2, 256
    s_cbranch_scc1 K1_END
    s_load_dwordx4 s[40:43], s[0:1], 0
    s_load_dwordx2 s[44:45], s[0:1], 16
    s_load_dwordx4 s[48:51], s[0:1], 32
    s_load_dwordx2 s[52:53], s[0:1], 48
    s_load_dwordx2 s[54:55], s[0:1], 72
    s_load_dwordx2 s[56:57], s[0:1], 96
    v_lshrrev_b32 v1, 6, v0
    v_and_b32 v2, 63, v0
    s_nop 0
    v_readfirstlane_b32 s30, v1
    s_and_b32 s3, s2, 7
    s_lshr_b32 s4, s2, 3
    s_and_b32 s5, s3, 1
    s_lshl_b32 s28, s5, 3
    s_and_b32 s5, s4, 7
    s_add_u32 s28, s28, s5          ; rb
    s_lshr_b32 s5, s3, 1
    s_and_b32 s5, s5, 1
    s_lshl_b32 s29, s5, 2
    s_lshr_b32 s5, s4, 3
    s_add_u32 s29, s29, s5          ; cb
    s_lshr_b32 s31, s30, 2          ; i
    s_and_b32 s32, s30, 3           ; j
    s_lshl_b32 s37, s30, 11         ; w*2048
    s_lshl_b32 s38, s30, 10
    s_add_u32 s38, s38, 65536
    s_mov_b32 s58, {f32hex(LOG2E)}
    s_mov_b32 s59, {f32hex(LOG2E)}
    s_lshr_b32 s3, s3, 2
    s_cmp_eq_u32 s3, 1
    s_waitcnt lgkmcnt(0)
    s_cbranch_scc1 K1_HTYPE
    """)
    for typ in (0, 1):
        if typ == 1: A.label("K1_HTYPE")
        gen_k1_type(A, typ)
    A.label("K1_END")
    A("s_endpgm")

def gen_k1_type(A, typ):
    RS = 3072 if typ == 0 else 2752
    V = RegAlloc("v", 3, 256)
    xp, wp = ("s40", "s42") if typ == 0 else ("s48", "s50")
    xpi, wpi = (40, 42) if typ == 0 else (40, 50)
    A(f"""
    s_lshl_b32 s3, s28, 17
    s_add_u32 s8, s{xpi}, s3
    s_addc_u32 s9, s{xpi+1}, 0
    s_mov_b32 s10, 0x20000
    s_mov_b32 s11, 0x00020000
    s_mov_b32 s12, s{wpi}
    s_mov_b32 s13, s{wpi+1}
    s_mov_b32 s14, {512*RS}
    s_mov_b32 s15, 0x00020000
    s_mov_b32 s16, s56
    s_mov_b32 s17, s57
    s_mov_b32 s18, 0x10000000
    s_mov_b32 s19, 0x00020000
    """)
    if typ == 0:
        A(f"""
        s_mov_b32 s20, s44
        s_mov_b32 s21, s45
        s_mov_b32 s22, 16384
        s_mov_b32 s23, 0x00020000
        s_mov_b32 s24, s54
        s_mov_b32 s25, s55
        s_mov_b32 s26, 1024
        s_mov_b32 s27, 0x00020000
        s_lshl_b32 s34, s29, 7
        s_add_u32 s35, s34, 1024
        s_add_u32 s36, s34, 2048
        """)
    else:
        A(f"""
        s_mov_b32 s20, s52
        s_mov_b32 s21, s53
        s_mov_b32 s22, 2752
        s_mov_b32 s23, 0x00020000
        s_mul_i32 s34, s29, 384
        s_add_u32 s35, s34, 128
        s_add_u32 s36, s34, 256
        """)
    lo4 = V.alloc(); g = V.alloc(); l7 = V.alloc(); l3 = V.alloc(); t0 = V.alloc(); t1 = V.alloc(); t2 = V.alloc()
    vdx = V.alloc(); vdw = V.alloc()
    A(f"""
    v_and_b32 v{lo4}, 15, v2
    v_lshrrev_b32 v{g}, 4, v2
    v_and_b32 v{l7}, 7, v2
    v_lshrrev_b32 v{l3}, 3, v2
    s_lshl_b32 s3, s30, 4
    v_add_u32 v{t0}, s3, v{l3}
    v_lshlrev_b32 v{t0}, 10, v{t0}
    v_xor_b32 v{t1}, v{l7}, v{l3}
    v_lshl_add_u32 v{vdx}, v{t1}, 4, v{t0}
    s_lshl_b32 s3, s30, 3
    v_add_u32 v{t0}, s3, v{l3}
    s_movk_i32 s3, {RS}
    v_mul_lo_u32 v{t0}, v{t0}, s3
    v_and_b32 v{t1}, 1, v{g}
    v_lshlrev_b32 v{t1}, 1, v{t1}
    s_and_b32 s3, s30, 1
    s_lshl_b32 s3, s3, 2
    v_or_b32 v{t1}, s3, v{t1}
    v_xor_b32 v{t1}, v{l7}, v{t1}
    v_lshl_add_u32 v{vdw}, v{t1}, 4, v{t0}
    """)
    def dma_stage(s):
        b = s % 4
        out = []
        for q in range(2):
            out.append(f"s_add_u32 m0, s37, {b*16384 + q*1024}")
            out.append(f"s_movk_i32 s39, {s*128 + q*8192}")
            out.append(f"buffer_load_dwordx4 v{vdx}, s[8:11], s39 offen lds")
        for p in range(3):
            out.append(f"s_add_u32 m0, s38, {b*24576 + p*8192}")
            out.append(f"s_add_u32 s39, s{34+p}, {s*64*RS}")
            out.append(f"buffer_load_dwordx4 v{vdw}, s[12:15], s39 offen lds")
        return out
    if typ == 0:
        wph = V.alloc(2, 2)
        wraw = V.alloc(4)
        gate = V.alloc(64, 4)
        vg = V.alloc(2)
        A(f"""
        s_lshl_b32 s3, s29, 2
        s_add_u32 s60, s3, s32          ; head
        s_lshl_b32 s3, s60, 9
        v_lshlrev_b32 v{t0}, 7, v{g}
        v_lshl_add_u32 v{t0}, v{lo4}, 1, v{t0}
        v_add_u32 v{t0}, s3, v{t0}
        buffer_load_ushort v{wraw}, v{t0}, s[20:23], 0 offen
        buffer_load_ushort v{wraw+1}, v{t0}, s[20:23], 0 offen offset:32
        buffer_load_ushort v{wraw+2}, v{t0}, s[20:23], 0 offen offset:64
        buffer_load_ushort v{wraw+3}, v{t0}, s[20:23], 0 offen offset:96
        s_lshl_b32 s3, s31, 6
        v_lshlrev_b32 v{t0}, 4, v{g}
        v_add_u32 v{vg}, s3, v{t0}
        v_xor_b32 v{vg+1}, 64, v{vg}
        """)
        for s in range(8):
            for a in range(2):
                A(f"buffer_load_dwordx4 {vr(gate + (2*s+a)*4, 4)}, v{vg+a}, s[24:27], 0 offen offset:{128*s}")
    else:
        b1r = V.alloc(6, 2)
        A(f"""
        s_mul_i32 s3, s29, 384
        s_mul_i32 s4, s32, 96
        s_add_u32 s3, s3, s4
        v_lshlrev_b32 v{t0}, 3, v{g}
        v_add_u32 v{t0}, s3, v{t0}
        """)
        for blk in range(3):
            A(f"buffer_load_dwordx2 {vr(b1r+2*blk,2)}, v{t0}, s[20:23], 0 offen offset:{32*blk}")
    for s in range(4):
        for x in dma_stage(s): A(x)
    vx = V.alloc(8); vw = V.alloc(12)
    for a in range(2):
        A(f"""
        s_xor_b32 s3, s31, {a}
        s_lshl_b32 s3, s3, 2
        v_add_u32 v{t0}, s3, v{g}
        v_xor_b32 v{t0}, v{t0}, v{l7}
        v_lshlrev_b32 v{t0}, 4, v{t0}
        v_lshl_add_u32 v{t0}, v{lo4}, 7, v{t0}
        """)
        for q in range(4):
            A(f"""
            s_add_u32 s3, s32, {q}
            s_and_b32 s3, s3, 3
            s_lshl_b32 s3, s3, 11
            s_lshl_b32 s4, s31, 13
            s_add_u32 s3, s3, s4
            v_add_u32 v{vx + a*4 + q}, s3, v{t0}
            """)
    rr = V.alloc(); ff = V.alloc(); wb = V.alloc()
    A(f"""
    v_lshrrev_b32 v{rr}, 2, v{lo4}
    v_lshrrev_b32 v{ff}, 1, v{rr}
    v_and_b32 v{t0}, 1, v{g}
    v_lshl_or_b32 v{ff}, v{t0}, 1, v{ff}
    v_lshl_add_u32 v{wb}, v{g}, 3, v{rr}
    v_lshlrev_b32 v{wb}, 7, v{wb}
    v_and_b32 v{t0}, 3, v{lo4}
    v_lshl_add_u32 v{wb}, v{t0}, 3, v{wb}
    """)
    for blk in range(3):
        if typ == 0:
            A(f"""
            s_mov_b32 s4, s32
            s_movk_i32 s5, {blk*8192}
            """)
        else:
            A(f"""
            s_mul_i32 s3, s32, 3
            s_add_u32 s3, s3, {blk}
            s_and_b32 s4, s3, 3
            s_lshr_b32 s5, s3, 2
            s_lshl_b32 s5, s5, 13
            """)
        A(f"""
        v_xor_b32 v{t0}, s4, v{ff}
        v_lshl_add_u32 v{t0}, v{t0}, 5, v{wb}
        """)
        for a in range(2):
            for half in range(2):
                A(f"""
                s_xor_b32 s3, s31, {a}
                s_lshl_b32 s3, s3, 12
                s_add_u32 s3, s3, s5
                s_add_u32 s3, s3, {65536 + half*49152}
                v_add_u32 v{vw + (blk*2 + a)*2 + half}, s3, v{t0}
                """)
    acc = V.alloc(48, 4)
    xf = V.alloc(32, 4)
    wf = V.alloc(24, 4)
    st = V.alloc(6, 2)
    for r in range(48): A(f"v_mov_b32 v{acc+r}, 0")
    for r in range(6): A(f"v_mov_b32 v{st+r}, 0")
    ones = V.alloc()
    A(f"v_mov_b32 v{ones}, 0x3f803f80")
    def accr(blk, q): return acc + (blk*4 + q)*4
    for s in range(8):
        b = s % 4
        nw = {0: 15, 1: 10, 2: 10, 3: 10, 4: 10, 5: 10, 6: 5, 7: 0}[s]
        A(f"s_waitcnt vmcnt({nw})")
        A("s_barrier")
        if 1 <= s <= 4:
            for x in dma_stage(s + 3): A(x)
        def reads(a):
            out = []
            o = []
            for blk in range(3):
                base = vw + (blk*2 + a)*2 + (b >> 1)
                off = (b & 1) * 24576
                o.append([f"ds_read_b64_tr_b16 {vr(wf + (a*3+blk)*4, 2)}, v{base} offset:{off}",
                          f"ds_read_b64_tr_b16 {vr(wf + (a*3+blk)*4 + 2, 2)}, v{base} offset:{off+512}"])
            xs = [f"ds_read_b128 {vr(xf + (a*4+q)*4, 4)}, v{vx + a*4 + q} offset:{b*16384}" for q in range(4)]
            out = o[0] + xs + o[1] + o[2]
            return out
        def mfmas(a):
            out = []
            for blk in range(3):
                for q in range(4):
                    X = vr(xf + (a*4+q)*4, 4); W = vr(wf + (a*3+blk)*4, 4); C = vr(accr(blk, q), 4)
                    if typ == 0 and blk == 2: out.append(f"v_mfma_f32_16x16x32_bf16 {C}, {X}, {W}, {C}")
                    else: out.append(f"v_mfma_f32_16x16x32_bf16 {C}, {W}, {X}, {C}")
            return out
        def stats(a):
            out = []
            x0 = xf + (a*4+0)*4
            if typ == 0:
                for d in range(4): out.append(f"v_dot2c_f32_bf16 v{st + (d&1)}, v{x0+d}, v{gate + (2*s+a)*4 + d}")
            else:
                for d in range(4):
                    out.append(f"v_dot2c_f32_bf16 v{st}, v{x0+d}, v{ones}")
                    out.append(f"v_dot2c_f32_bf16 v{st+1}, v{x0+d}, v{x0+d}")
                if a == 0:
                    for blk in range(3):
                        for d in range(4):
                            out.append(f"v_dot2c_f32_bf16 v{st+2+blk}, v{wf + blk*4 + d}, v{ones}")
            return out
        r0 = reads(0); r1 = reads(1)
        for x in r0: A(x)
        for x in r1[:5]: A(x)
        A("s_waitcnt lgkmcnt(5)")
        m0 = mfmas(0); s0 = stats(0)
        extra = r1[5:] + s0
        k = 0
        per = (len(extra) + len(m0) - 1) // len(m0)
        for m in m0:
            A(m)
            for _ in range(per):
                if k < len(extra): A(extra[k]); k += 1
        A("s_waitcnt lgkmcnt(0)")
        m1 = mfmas(1); s1 = stats(1)
        k = 0
        per = (len(s1) + len(m1) - 1) // len(m1)
        for m in m1:
            A(m)
            for _ in range(per):
                if k < len(s1): A(s1[k]); k += 1
    if typ == 0: epi_qkv(A, V, locals())
    else: epi_h(A, V, locals())
    A("s_waitcnt vmcnt(0)")
    if typ == 0: A("s_endpgm")

def epi_qkv(A, V, L):
    acc = L["acc"]; st = L["st"]; lo4 = L["lo4"]; g = L["g"]; wph = L["wph"]; t0 = L["t0"]; t1 = L["t1"]; xf = L["xf"]; gate = L["gate"]; ones = L["ones"]
    accr = L["accr"]
    T = RegAlloc("v", gate, gate + 64)
    qb = T.alloc(8, 4); kb = T.alloc(8, 4); vb = T.alloc(8, 4)
    pq = T.alloc(16, 4); pk = T.alloc(16, 4)
    idn = T.alloc(6, 2); onesf = T.alloc(2, 2)
    X2 = RegAlloc("v", xf, xf + 56)
    tmp = X2.alloc(48, 4)
    lane = 2
    A(f"v_add_f32 v{st}, v{st}, v{st+1}")
    for x in xsum_one(st, t0, "v_add_f32"): A(x)
    A(f"""
    v_mul_f32 v{st}, {f32hex(-LOG2E)}, v{st}
    v_exp_f32 v{st}, v{st}
    s_nop 0
    v_add_f32 v{st}, 1.0, v{st}
    v_rcp_f32 v{st}, v{st}
    s_lshl_b32 s3, s28, 7
    s_lshl_b32 s4, s31, 6
    s_add_u32 s3, s3, s4
    s_lshl_b32 s4, s32, 4
    s_add_u32 s3, s3, s4
    s_lshl_b32 s3, s3, 2
    s_add_u32 s3, s3, {WS_G}
    v_lshlrev_b32 v{t0}, 2, v{lo4}
    v_add_u32 v{t0}, s3, v{t0}
    s_cmp_lg_u32 s29, 0
    s_cbranch_scc1 K1_NOGATE
    v_cmp_gt_u32 vcc, 16, v{lane}
    s_and_saveexec_b64 s[62:63], vcc
    buffer_store_dword v{st}, v{t0}, s[16:19], 0 offen
    s_mov_b64 exec, s[62:63]
    """)
    A.label("K1_NOGATE")
    wraw = L["wraw"]
    A(f"v_lshl_or_b32 v{wph}, v{wraw+1}, 16, v{wraw}")
    A(f"v_lshl_or_b32 v{wph+1}, v{wraw+3}, 16, v{wraw+2}")
    for q in range(4):
        for blk, dst in ((0, qb), (1, kb), (2, vb)):
            a = accr(blk, q)
            A(f"v_cvt_pk_bf16_f32 v{dst+2*q}, v{a}, v{a+1}")
            A(f"v_cvt_pk_bf16_f32 v{dst+2*q+1}, v{a+2}, v{a+3}")
    A(f"""
    v_lshlrev_b32 v{t0}, 2, v{g}
    v_sub_u32 v{t0}, v{lo4}, v{t0}      ; n - 4g
    v_mov_b32 v{idn}, 0
    v_mov_b32 v{idn+1}, 0
    v_mov_b32 v{idn+4}, 0
    v_mov_b32 v{idn+5}, 0
    v_mov_b32 v{t1}, 0x3f80
    v_cmp_eq_u32 vcc, 0, v{t0}
    v_cndmask_b32 v{idn+2}, 0, v{t1}, vcc
    v_cmp_eq_u32 vcc, 2, v{t0}
    v_cndmask_b32 v{idn+3}, 0, v{t1}, vcc
    v_mov_b32 v{t1}, 0x3f800000
    v_cmp_eq_u32 vcc, 1, v{t0}
    v_cndmask_b32 v{idn+2}, v{idn+2}, v{t1}, vcc
    v_cmp_eq_u32 vcc, 3, v{t0}
    v_cndmask_b32 v{idn+3}, v{idn+3}, v{t1}, vcc
    """)
    for q in range(4):
        A(f"v_mfma_f32_16x16x16_bf16 {vr(pq+4*q,4)}, {vr(wph,2)}, {vr(qb+2*q,2)}, 0")
    for q in range(4):
        A(f"v_mfma_f32_16x16x16_bf16 {vr(pk+4*q,4)}, {vr(wph,2)}, {vr(kb+2*q,2)}, 0")
    phq = acc; phk = acc + 16
    vaddr = V.alloc(4)
    for q in range(4):
        A(f"""
        s_add_u32 s3, s32, {q}
        s_and_b32 s3, s3, 3
        s_lshl_b32 s4, s28, 3
        s_add_u32 s3, s3, s4
        s_lshl_b32 s4, s31, 2
        s_add_u32 s3, s3, s4
        s_lshl_b32 s3, s3, 5
        s_add_u32 s3, s3, s60
        s_lshl_b32 s3, s3, 10
        s_add_u32 s3, s3, {WS_PQ}
        v_lshlrev_b32 v{t0}, 4, v{lane}
        v_add_u32 v{vaddr+q}, s3, v{t0}
        """)
    for x in interleave([softmax_tile(pk+4*q, tmp+12*q, phk+4*q, 58) for q in range(4)]): A(x)
    d1 = pk; d2 = tmp
    for q in range(4):
        A(f"v_mfma_f32_16x16x32_bf16 {vr(d1+4*q,4)}, {vr(phk+4*q,4)}, {vr(idn+2,4)}, 0")
        A(f"v_mfma_f32_16x16x32_bf16 {vr(d2+4*q,4)}, {vr(phk+4*q,4)}, {vr(idn,4)}, 0")
    tq = [tmp+16, tmp+28, acc+32, -1]
    tq[3] = qb
    for x in interleave([softmax_tile(pq+4*q, tq[q], phq+4*q, 58) for q in range(4)]): A(x)
    for q in range(4):
        A(f"buffer_store_dwordx4 {vr(phq+4*q,4)}, v{vaddr+q}, s[16:19], 0 offen")
    a1 = phk; a2 = phk + 8
    for q in range(4):
        A(f"v_cvt_pk_bf16_f32 v{a1+2*q}, v{d1+4*q}, v{d1+4*q+1}")
        A(f"v_cvt_pk_bf16_f32 v{a1+2*q+1}, v{d1+4*q+2}, v{d1+4*q+3}")
        A(f"v_cvt_pk_bf16_f32 v{a2+2*q}, v{d2+4*q}, v{d2+4*q+1}")
        A(f"v_cvt_pk_bf16_f32 v{a2+2*q+1}, v{d2+4*q+2}, v{d2+4*q+3}")
    of = d1
    kvp = d1 + 4; kvm = d1 + 8; zp = d2; zm = d2 + 4
    for r in range(4): A(f"v_mov_b32 v{of+r}, 0x3f803f80")
    for pr in range(2):
        c = (lambda r: "0") if pr == 0 else (lambda r: vr(r, 4))
        A(f"v_mfma_f32_16x16x32_bf16 {vr(kvp,4)}, {vr(a1+4*pr,4)}, {vr(vb+4*pr,4)}, {c(kvp)}")
        A(f"v_mfma_f32_16x16x32_bf16 {vr(kvm,4)}, {vr(a2+4*pr,4)}, {vr(vb+4*pr,4)}, {c(kvm)}")
        A(f"v_mfma_f32_16x16x32_bf16 {vr(zp,4)}, {vr(a1+4*pr,4)}, {vr(of,4)}, {c(zp)}")
        A(f"v_mfma_f32_16x16x32_bf16 {vr(zm,4)}, {vr(a2+4*pr,4)}, {vr(of,4)}, {c(zm)}")
    A(f"""
    s_lshl_b32 s3, s28, 1
    s_add_u32 s3, s3, s31
    s_lshl_b32 s3, s3, 5
    s_add_u32 s3, s3, s60
    s_lshl_b32 s4, s3, 11
    s_add_u32 s4, s4, {WS_KVP}
    v_lshlrev_b32 v{t0}, 3, v{lane}
    v_add_u32 v{t0}, s4, v{t0}
    s_lshl_b32 s4, s3, 7
    s_add_u32 s4, s4, {WS_ZP}
    v_lshlrev_b32 v{t1}, 5, v{g}
    v_add_u32 v{t1}, s4, v{t1}
    buffer_store_dwordx2 {vr(kvp,2)}, v{t0}, s[16:19], 0 offen
    buffer_store_dwordx2 {vr(kvp+2,2)}, v{t0}, s[16:19], 0 offen offset:512
    buffer_store_dwordx2 {vr(kvm,2)}, v{t0}, s[16:19], 0 offen offset:1024
    buffer_store_dwordx2 {vr(kvm+2,2)}, v{t0}, s[16:19], 0 offen offset:1536
    v_cmp_eq_u32 vcc, 0, v{lo4}
    s_and_saveexec_b64 s[62:63], vcc
    buffer_store_dwordx4 {vr(zp,4)}, v{t1}, s[16:19], 0 offen
    buffer_store_dwordx4 {vr(zm,4)}, v{t1}, s[16:19], 0 offen offset:16
    s_mov_b64 exec, s[62:63]
    """)

def epi_h(A, V, L):
    acc = L["acc"]; st = L["st"]; lo4 = L["lo4"]; g = L["g"]; b1r = L["b1r"]; t0 = L["t0"]; t1 = L["t1"]; t2 = L["t2"]; xf = L["xf"]
    accr = L["accr"]; lane = 2
    T = RegAlloc("v", xf, xf + 56)
    for x in xsum_pair(st, st+1, t0, t1, "v_add_f32"): A(x)
    for x in interleave([xsum_one(st+2+b, T.alloc(), "v_add_f32") for b in range(3)]): A(x)
    A(f"""
    s_mov_b32 s61, {f32hex(1/512)}
    v_mul_f32 v{st}, s61, v{st}
    v_mul_f32 v{t0}, v{st}, v{st}
    v_fma_f32 v{st+1}, v{st+1}, s61, -v{t0}
    """)
    A(f"""
    v_max_f32 v{st+1}, 0, v{st+1}
    v_add_f32 v{st+1}, {f32hex(1e-5)}, v{st+1}
    v_rsq_f32 v{t0}, v{st+1}
    s_nop 0
    v_mul_f32 v{t1}, v{t0}, v{st}
    """)
    A(f"""
    s_lshl_b32 s3, s31, 6
    s_lshl_b32 s4, s32, 4
    s_add_u32 s3, s3, s4
    v_add_u32 v{t2}, s3, v{lo4}
    v_lshlrev_b32 v{t2}, 3, v{t2}
    """)
    pr = T.alloc(2, 2)
    A(f"""
    v_mov_b32 v{pr}, v{t0}
    v_mov_b32 v{pr+1}, v{t1}
    ds_write_b64 v{t2}, {vr(pr,2)}
    s_mul_i32 s3, s31, 768
    s_mul_i32 s4, s32, 192
    s_add_u32 s3, s3, s4
    s_add_u32 s3, s3, 1024
    v_lshl_add_u32 v{t2}, v{lo4}, 2, s3
    ds_write_b32 v{t2}, v{st+2}
    ds_write_b32 v{t2}, v{st+3} offset:64
    ds_write_b32 v{t2}, v{st+4} offset:128
    s_waitcnt lgkmcnt(0)
    s_barrier
    """)
    sq = T.alloc(8, 2); cs = T.alloc(12, 4); cs2 = T.alloc(12, 4); bb = T.alloc(12, 4)
    for q in range(4):
        A(f"""
        s_add_u32 s3, s32, {q}
        s_and_b32 s3, s3, 3
        s_lshl_b32 s3, s3, 4
        s_lshl_b32 s4, s31, 6
        s_add_u32 s3, s3, s4
        v_add_u32 v{t2}, s3, v{lo4}
        v_lshlrev_b32 v{t2}, 3, v{t2}
        ds_read_b64 {vr(sq+2*q,2)}, v{t2}
        """)
    A(f"""
    s_mul_i32 s4, s32, 192
    s_add_u32 s4, s4, 1024
    v_lshl_add_u32 v{t2}, v{g}, 4, s4
    """)
    for blk in range(3):
        A(f"ds_read_b128 {vr(cs+4*blk,4)}, v{t2} offset:{64*blk}")
        A(f"ds_read_b128 {vr(cs2+4*blk,4)}, v{t2} offset:{64*blk+768}")
    for blk in range(3):
        for d in range(2):
            A(f"v_lshlrev_b32 v{bb+4*blk+2*d}, 16, v{b1r+2*blk+d}")
            A(f"v_and_b32 v{bb+4*blk+2*d+1}, 0xffff0000, v{b1r+2*blk+d}")
    A("s_waitcnt lgkmcnt(0)")
    for h in range(6):
        A(f"v_pk_add_f32 {vr(cs+2*h,2)}, {vr(cs+2*h,2)}, {vr(cs2+2*h,2)}")
    C0 = -2.0 * 0.7978845608028654 * LOG2E
    A(f"""
    s_mov_b32 s64, {f32hex(C0)}
    s_mov_b32 s65, {f32hex(C0)}
    s_mov_b32 s66, {f32hex(C0*0.044715)}
    s_mov_b32 s67, {f32hex(C0*0.044715)}
    s_mov_b32 s68, 1.0
    s_mov_b32 s69, 1.0
    """)
    c0v = T.alloc(2, 2)
    A(f"v_mov_b32 v{c0v}, s64")
    A(f"v_mov_b32 v{c0v+1}, s64")
    tm = cs2
    outr = V.alloc(24, 4)
    def gelu_pair(blk, q, h, tmpb):
        a = accr(blk, q) + 2*h
        a_ = vr(a, 2); u = vr(tmpb, 2); w_ = vr(tmpb+2, 2)
        s_ = vr(sq+2*q, 2)
        return [
            f"v_pk_fma_f32 {u}, {vr(cs+4*blk+2*h,2)}, {s_}, {vr(bb+4*blk+2*h,2)} op_sel:[0,1,0] op_sel_hi:[1,1,1] neg_lo:[0,1,0] neg_hi:[0,1,0]",
            f"v_pk_fma_f32 {a_}, {a_}, {s_}, {u} op_sel_hi:[1,0,1]",
            f"v_pk_mul_f32 {u}, {a_}, {a_}",
            f"v_pk_fma_f32 {u}, {u}, s[66:67], {vr(c0v,2)}",
            f"v_pk_mul_f32 {u}, {u}, {a_}",
            f"v_exp_f32 v{tmpb}, v{tmpb}",
            f"v_exp_f32 v{tmpb+1}, v{tmpb+1}",
            f"v_pk_add_f32 {u}, {u}, s[68:69]",
            f"v_rcp_f32 v{tmpb}, v{tmpb}",
            f"v_rcp_f32 v{tmpb+1}, v{tmpb+1}",
            f"v_pk_mul_f32 {a_}, {a_}, {u}",
            f"v_cvt_pk_bf16_f32 v{outr+6*q+2*blk+h}, v{a}, v{a+1}",
        ]
    jobs = [(blk, q, h) for q in range(4) for blk in range(3) for h in range(2)]
    for base in range(0, len(jobs), 3):
        grp = jobs[base:base+3]
        for x in interleave([gelu_pair(b_, q_, h_, tm + 4*n) for n, (b_, q_, h_) in enumerate(grp)]): A(x)
    A(f"""
    s_lshl_b32 s3, s29, 2
    s_add_u32 s60, s3, s32
    s_cmp_gt_u32 s60, 28
    s_cbranch_scc1 K1_END
    """)
    for q in range(4):
        A(f"""
        s_add_u32 s3, s32, {q}
        s_and_b32 s3, s3, 3
        s_lshl_b32 s4, s28, 3
        s_add_u32 s3, s3, s4
        s_lshl_b32 s4, s31, 2
        s_add_u32 s3, s3, s4
        s_mul_i32 s3, s3, {NCH}
        s_add_u32 s3, s3, s60
        s_lshl_b32 s4, s3, 10
        v_lshl_add_u32 v{t0}, v{lane}, 4, s4
        buffer_store_dwordx4 {vr(outr+6*q,4)}, v{t0}, s[16:19], 0 offen
        s_lshl_b32 s4, s3, 9
        s_add_u32 s4, s4, {WS_H16}
        v_lshl_add_u32 v{t1}, v{lane}, 3, s4
        s_cmp_eq_u32 s60, 28
        s_cbranch_scc1 K1_SKIP16_{q}
        buffer_store_dwordx2 {vr(outr+6*q+4,2)}, v{t1}, s[16:19], 0 offen
        """)
        A.label(f"K1_SKIP16_{q}")
```

```python
from asmlib import *
from gen_k1 import *

def gen_k2(A, name):
    A.raw(f".globl {name}\n.p2align 8\n.type {name},@function")
    A.label(name)
    V = RegAlloc("v", 3, 256)
    lane = 2
    A(f"""
    s_cmp_ge_u32 s2, 256
    s_cbranch_scc1 K2_END
    s_load_dwordx2 s[40:41], s[0:1], 24
    s_load_dwordx4 s[44:47], s[0:1], 56
    s_load_dwordx4 s[48:51], s[0:1], 80
    s_load_dwordx2 s[52:53], s[0:1], 96
    v_lshrrev_b32 v1, 6, v0
    v_and_b32 v2, 63, v0
    s_nop 0
    v_readfirstlane_b32 s30, v1
    s_and_b32 s3, s2, 7
    s_lshr_b32 s4, s2, 3
    s_lshr_b32 s5, s3, 1
    s_lshl_b32 s28, s5, 3
    s_and_b32 s5, s4, 7
    s_add_u32 s28, s28, s5          ; tb (0..31)
    s_and_b32 s5, s3, 1
    s_lshl_b32 s29, s5, 2
    s_lshr_b32 s5, s4, 3
    s_add_u32 s29, s29, s5          ; nb (0..7)
    s_waitcnt lgkmcnt(0)
    s_mov_b32 s8, s44               ; w2
    s_mov_b32 s9, s45
    s_mov_b32 s10, {1376*1024}
    s_mov_b32 s11, 0x00020000
    s_mov_b32 s12, s40              ; wo
    s_mov_b32 s13, s41
    s_mov_b32 s14, {512*1024}
    s_mov_b32 s15, 0x00020000
    s_mov_b32 s16, s52              ; ws
    s_mov_b32 s17, s53
    s_mov_b32 s18, 0x10000000
    s_mov_b32 s19, 0x00020000
    s_mov_b32 s20, s48              ; out
    s_mov_b32 s21, s49
    s_mov_b32 s22, 0x200000
    s_mov_b32 s23, 0x00020000
    s_mov_b32 s24, s46              ; b2
    s_mov_b32 s25, s47
    s_mov_b32 s26, 1024
    s_mov_b32 s27, 0x00020000
    s_mov_b32 s32, s50              ; dbg
    s_mov_b32 s33, s51
    s_mov_b32 s34, 256
    s_mov_b32 s35, 0x00020000
    s_mul_i32 s36, s30, 20480
    """)
    lo4 = V.alloc(); g = V.alloc(); l7 = V.alloc(); l3 = V.alloc(); t0 = V.alloc(); t1 = V.alloc(); t2 = V.alloc()
    vdw = V.alloc(); vrd = V.alloc(4); vha = V.alloc(); vhb = V.alloc()
    A(f"""
    v_and_b32 v{lo4}, 15, v2
    v_lshrrev_b32 v{g}, 4, v2
    v_and_b32 v{l7}, 7, v2
    v_lshrrev_b32 v{l3}, 3, v2
    v_lshrrev_b32 v{t0}, 1, v{l3}
    v_lshlrev_b32 v{t0}, 1, v{t0}
    v_xor_b32 v{t0}, v{l7}, v{t0}
    v_lshlrev_b32 v{t0}, 4, v{t0}
    v_lshl_add_u32 v{vdw}, v{l3}, 10, v{t0}
    s_lshl_b32 s3, s29, 7
    v_add_u32 v{vdw}, s3, v{vdw}
    """)
    rr = V.alloc()
    A(f"""
    v_lshrrev_b32 v{rr}, 2, v{lo4}
    v_lshl_add_u32 v{rr}, v{g}, 2, v{rr}        ; row = 4g + r
    v_lshrrev_b32 v{t0}, 1, v{rr}
    v_and_b32 v{t0}, 3, v{t0}                   ; f
    v_and_b32 v{t1}, 3, v{lo4}
    v_lshlrev_b32 v{t1}, 3, v{t1}
    v_lshl_add_u32 v{t1}, v{rr}, 7, v{t1}
    v_add_u32 v{t1}, s36, v{t1}
    """)
    for n4 in range(4):
        A(f"""
        v_xor_b32 v{t2}, {n4}, v{t0}
        v_lshl_add_u32 v{vrd+n4}, v{t2}, 5, v{t1}
        """)
    A(f"""
    s_lshl_b32 s3, s28, 2
    s_mul_i32 s3, s3, {NCH}
    s_add_u32 s3, s3, s30
    s_lshl_b32 s4, s3, 10
    v_lshl_add_u32 v{vha}, v{lane}, 4, s4
    s_lshl_b32 s4, s3, 9
    s_add_u32 s4, s4, {WS_H16}
    v_lshl_add_u32 v{vhb}, v{lane}, 3, s4
    """)
    acc = V.alloc(64, 4)
    hA = V.alloc(96, 4)
    wfr = V.alloc(24, 4)
    gq = V.alloc(4);
    misc = V.alloc(16, 4)
    def ha32(n, tq): return hA + n*24 + tq*4
    def ha16(n, tq): return hA + n*24 + 16 + tq*2
    def load_h(n):
        out = []
        for tq in range(4):
            out.append(f"s_mov_b32 s37, {(tq*NCH + 8*n)*1024}")
            out.append(f"buffer_load_dwordx4 {vr(ha32(n,tq),4)}, v{vha}, s[16:19], s37 offen")
        for tq in range(4):
            out.append(f"s_mov_b32 s37, {(tq*NCH + 8*n)*512}")
            out.append(f"buffer_load_dwordx2 {vr(ha16(n,tq),2)}, v{vhb}, s[16:19], s37 offen")
        return out
    def dma_w2(n, buf):
        out = []
        for q in range(6):
            out.append(f"s_add_u32 m0, s36, {buf*6144 + q*1024}")
            out.append(f"s_add_u32 s37, s38, {(8*n*48 + 8*q)*1024}")
            out.append(f"buffer_load_dwordx4 v{vdw}, s[8:11], s37 offen lds")
        return out
    def dma_wo(half, buf):
        out = []
        for q in range(4):
            out.append(f"s_add_u32 m0, s36, {buf*6144 + q*1024}")
            out.append(f"s_add_u32 s37, s39, {(32*half + 8*q)*1024}")
            out.append(f"buffer_load_dwordx4 v{vdw}, s[12:15], s37 offen lds")
        return out
    A("s_mul_i32 s38, s30, 49152")
    A("s_lshl_b32 s39, s30, 16")
    A(f"""
    s_lshl_b32 s3, s28, 8
    s_add_u32 s3, s3, {WS_G}
    v_lshl_add_u32 v{t0}, v{lo4}, 2, s3
    """)
    for tq in range(4):
        A(f"buffer_load_dword v{gq+tq}, v{t0}, s[16:19], 0 offen offset:{64*tq}")
    A(f"""
    s_cmp_lg_u32 s30, 7
    s_cbranch_scc1 K2_NOPRE
    s_cmp_ge_u32 s2, 128
    s_cbranch_scc1 K2_NOPRE
    s_lshr_b32 s40, s2, 2       ; head
    s_and_b32 s41, s2, 3        ; rp
    s_lshl_b32 s3, s40, 11
    s_lshl_b32 s4, s41, 9
    s_add_u32 s3, s3, s4
    s_add_u32 s3, s3, {WS_KVP}
    v_lshl_add_u32 v{t0}, v{lane}, 3, s3
    """)
    pb = hA
    for p in range(32):
        A(f"s_mov_b32 s37, {p*65536}")
        A(f"buffer_load_dwordx2 {vr(pb+2*p,2)}, v{t0}, s[16:19], s37 offen")
    zb = acc
    A(f"""
    s_lshl_b32 s3, s40, 7
    s_add_u32 s3, s3, {WS_ZP}
    v_lshl_add_u32 v{t1}, v{lo4}, 3, s3
    """)
    for p in range(32):
        A(f"s_mov_b32 s37, {p*4096}")
        A(f"buffer_load_dwordx2 {vr(zb+2*p,2)}, v{t1}, s[16:19], s37 offen")
    A("s_waitcnt vmcnt(32)")
    for stp in (16, 8, 4, 2, 1):
        for p in range(stp):
            A(f"v_pk_add_f32 {vr(pb+2*p,2)}, {vr(pb+2*p,2)}, {vr(pb+2*(p+stp),2)}")
    A(f"""
    v_cvt_pk_bf16_f32 v{pb}, v{pb}, v{pb+1}
    s_lshl_b32 s3, s40, 10
    s_lshl_b32 s4, s41, 2
    s_add_u32 s3, s3, s4
    s_add_u32 s3, s3, {WS_KVF}
    v_lshl_add_u32 v{t0}, v{lane}, 4, s3
    buffer_store_dword v{pb}, v{t0}, s[16:19], 0 offen sc0 sc1
    s_waitcnt vmcnt(1)
    """)
    for stp in (16, 8, 4, 2, 1):
        for p in range(stp):
            A(f"v_pk_add_f32 {vr(zb+2*p,2)}, {vr(zb+2*p,2)}, {vr(zb+2*(p+stp),2)}")
    A(f"""
    v_cvt_pk_bf16_f32 v{zb}, v{zb}, v{zb+1}
    s_lshl_b32 s3, s40, 6
    s_add_u32 s3, s3, {WS_ZF}
    v_lshl_add_u32 v{t1}, v{lo4}, 2, s3
    s_cmp_lg_u32 s41, 0
    s_cbranch_scc1 K2_NOZ
    v_cmp_gt_u32 vcc, 16, v{lane}
    s_and_saveexec_b64 s[42:43], vcc
    buffer_store_dword v{zb}, v{t1}, s[16:19], 0 offen sc0 sc1
    s_mov_b64 exec, s[42:43]
    """)
    A.label("K2_NOZ")
    A(f"""
    s_waitcnt vmcnt(0)
    v_mov_b32 v{t0}, 0
    v_mov_b32 v{t1}, 1
    v_cmp_eq_u32 vcc, 0, v{lane}
    s_and_saveexec_b64 s[42:43], vcc
    buffer_atomic_add v{t1}, v{t0}, s[32:35], 0 offen sc1
    s_mov_b64 exec, s[42:43]
    """)
    A.label("K2_NOPRE")
    for n in range(3):
        for x in dma_w2(n, n): A(x)
        for x in load_h(n): A(x)
    for r in range(64): A(f"v_mov_b32 v{acc+r}, 0")
    def accr(n4, tq): return acc + (n4*4 + tq)*4
    def chunk_compute(n, buf, with16=True):
        rd = []
        for n4 in range(4):
            rd.append(f"ds_read_b64_tr_b16 {vr(wfr+6*n4,2)}, v{vrd+n4} offset:{buf*6144}")
            rd.append(f"ds_read_b64_tr_b16 {vr(wfr+6*n4+2,2)}, v{vrd+n4} offset:{buf*6144+2048}")
            if with16: rd.append(f"ds_read_b64_tr_b16 {vr(wfr+6*n4+4,2)}, v{vrd+n4} offset:{buf*6144+4096}")
        for x in rd: A(x)
        A("s_waitcnt lgkmcnt(0)")
        for n4 in range(4):
            for tq in range(4):
                A(f"v_mfma_f32_16x16x32_bf16 {vr(accr(n4,tq),4)}, {vr(wfr+6*n4,4)}, {vr(ha32(n,tq),4)}, {vr(accr(n4,tq),4)}")
        if with16:
            for n4 in range(4):
                for tq in range(4):
                    A(f"v_mfma_f32_16x16x16_bf16 {vr(accr(n4,tq),4)}, {vr(wfr+6*n4+4,2)}, {vr(ha16(n,tq),2)}, {vr(accr(n4,tq),4)}")
    A("s_waitcnt vmcnt(28)")
    chunk_compute(0, 0)
    A(f"""
    s_cmp_gt_u32 s30, 4
    s_cbranch_scc1 K2_NO3
    """)
    for x in dma_w2(3, 0): A(x)
    for x in load_h(3): A(x)
    A("s_waitcnt vmcnt(28)")
    chunk_compute(1, 1)
    for x in dma_wo(0, 1): A(x)
    A("s_waitcnt vmcnt(18)")
    chunk_compute(2, 2)
    for x in dma_wo(1, 2): A(x)
    A("s_waitcnt vmcnt(8)")
    A(f"""
    s_cmp_eq_u32 s30, 4
    s_cbranch_scc1 K2_C3NO16
    """)
    chunk_compute(3, 0, True)
    A("s_branch K2_ODONE")
    A.label("K2_C3NO16")
    chunk_compute(3, 0, False)
    A("s_branch K2_ODONE")
    A.label("K2_NO3")
    A("s_waitcnt vmcnt(14)")
    chunk_compute(1, 1)
    for x in dma_wo(0, 1): A(x)
    A("s_waitcnt vmcnt(4)")
    chunk_compute(2, 2)
    for x in dma_wo(1, 2): A(x)
    A.label("K2_ODONE")
    pqf = hA
    A(f"""
    s_lshl_b32 s3, s28, 2
    s_lshl_b32 s3, s3, 5
    s_lshl_b32 s4, s30, 2
    s_add_u32 s3, s3, s4
    s_lshl_b32 s3, s3, 10
    s_add_u32 s3, s3, {WS_PQ}
    v_lshl_add_u32 v{t0}, v{lane}, 4, s3
    """)
    for hh in range(4):
        for tq in range(4):
            A(f"s_mov_b32 s37, {(tq*32 + hh)*1024}")
            A(f"buffer_load_dwordx4 {vr(pqf+(hh*4+tq)*4,4)}, v{t0}, s[16:19], s37 offen")
    omg = misc
    for tq in range(4):
        A(f"v_sub_f32 v{omg+2*tq}, 1.0, v{gq+tq}")
    for n4 in range(4):
        for tq in range(4):
            for h in range(2):
                a = accr(n4, tq) + 2*h
                A(f"v_pk_mul_f32 {vr(a,2)}, {vr(a,2)}, {vr(omg+2*tq,2)} op_sel_hi:[1,0]")
    A(f"v_mov_b32 v{t1}, 0")
    A("s_mov_b32 s4, 0")
    A.label("K2_POLL")
    A(f"""
    buffer_load_dword v{t2}, v{t1}, s[32:35], 0 offen sc0 sc1
    s_waitcnt vmcnt(0)
    v_readfirstlane_b32 s3, v{t2}
    s_cmp_ge_u32 s3, 128
    s_cbranch_scc1 K2_POLLDONE
    s_add_u32 s4, s4, 1
    s_cmp_ge_u32 s4, 200000
    s_cbranch_scc1 K2_POLLDONE
    s_sleep 4
    s_branch K2_POLL
    """)
    A.label("K2_POLLDONE")
    kvf = hA + 64
    zf = hA + 80
    A(f"""
    s_lshl_b32 s3, s30, 12
    s_add_u32 s3, s3, {WS_KVF}
    v_lshl_add_u32 v{t0}, v{lane}, 4, s3
    s_lshl_b32 s3, s30, 8
    s_add_u32 s3, s3, {WS_ZF}
    v_lshl_add_u32 v{t1}, v{g}, 4, s3
    """)
    for hh in range(4):
        A(f"buffer_load_dwordx4 {vr(kvf+4*hh,4)}, v{t0}, s[16:19], 0 offen offset:{1024*hh} sc0 sc1")
        A(f"buffer_load_dwordx4 {vr(zf+4*hh,4)}, v{t1}, s[16:19], 0 offen offset:{64*hh} sc0 sc1")
    A("s_waitcnt vmcnt(0)")
    num = V.alloc(16, 4); den = V.alloc(16, 4)
    def obr(hh, tq): return pqf + hh*16 + 2*tq
    for hh in range(4):
        for tq in range(4):
            A(f"v_mfma_f32_16x16x32_bf16 {vr(num+4*tq,4)}, {vr(kvf+4*hh,4)}, {vr(pqf+(hh*4+tq)*4,4)}, 0")
            A(f"v_mfma_f32_16x16x32_bf16 {vr(den+4*tq,4)}, {vr(zf+4*hh,4)}, {vr(pqf+(hh*4+tq)*4,4)}, 0")
        for tq in range(4):
            A(f"v_add_f32 v{den+4*tq}, {f32hex(1e-6)}, v{den+4*tq}")
        for tq in range(4):
            A(f"v_rcp_f32 v{den+4*tq}, v{den+4*tq}")
        for tq in range(4):
            A(f"v_mul_f32 v{den+4*tq}, v{den+4*tq}, v{gq+tq}")
        for tq in range(4):
            for h in range(2):
                A(f"v_pk_mul_f32 {vr(num+4*tq+2*h,2)}, {vr(num+4*tq+2*h,2)}, {vr(den+4*tq,2)} op_sel_hi:[1,0]")
        for tq in range(4):
            A(f"v_cvt_pk_bf16_f32 v{obr(hh,tq)}, v{num+4*tq}, v{num+4*tq+1}")
            A(f"v_cvt_pk_bf16_f32 v{obr(hh,tq)+1}, v{num+4*tq+2}, v{num+4*tq+3}")
    for hh in range(4):
        buf = 1 + hh // 2
        for n4 in range(4):
            A(f"ds_read_b64_tr_b16 {vr(wfr+2*n4,2)}, v{vrd+n4} offset:{buf*6144 + (hh&1)*2048}")
        A("s_waitcnt lgkmcnt(0)")
        for n4 in range(4):
            for tq in range(4):
                A(f"v_mfma_f32_16x16x16_bf16 {vr(accr(n4,tq),4)}, {vr(wfr+2*n4,2)}, {vr(obr(hh,tq),2)}, {vr(accr(n4,tq),4)}")
    A(f"v_lshl_add_u32 v{t0}, v{lane}, 4, s36")
    for tl in range(16):
        A(f"ds_write_b128 v{t0}, {vr(acc+4*tl,4)} offset:{tl*1024}")
    A(f"""
    s_lshr_b32 s3, s30, 1
    s_lshl_b32 s3, s3, 5
    s_lshl_b32 s4, s29, 7
    s_add_u32 s3, s3, s4
    v_lshl_add_u32 v{t1}, v{g}, 3, s3
    buffer_load_dwordx2 {vr(misc+8,2)}, v{t1}, s[24:27], 0 offen
    s_waitcnt lgkmcnt(0)
    s_barrier
    s_lshl_b32 s4, s30, 11
    v_lshl_add_u32 v{t0}, v{lane}, 4, s4
    """)
    red = hA
    for tl in range(2):
        for wv in range(8):
            A(f"ds_read_b128 {vr(red+(tl*8+wv)*4,4)}, v{t0} offset:{(wv*20480 + tl*1024) % 65536}" if wv*20480 + tl*1024 < 65536 else "")
    A(f"v_add_u32 v{t2}, 0x14000, v{t0}")
    for tl in range(2):
        for wv in range(4, 8):
            A(f"ds_read_b128 {vr(red+(tl*8+wv)*4,4)}, v{t2} offset:{(wv-4)*20480 + tl*1024}")
    A("s_waitcnt vmcnt(0) lgkmcnt(0)")
    for tl in range(2):
        for stp in (4, 2, 1):
            for wv in range(stp):
                for h in range(2):
                    a = red+(tl*8+wv)*4+2*h; b = red+(tl*8+wv+stp)*4+2*h
                    A(f"v_pk_add_f32 {vr(a,2)}, {vr(a,2)}, {vr(b,2)}")
    bb = misc + 12
    A(f"""
    v_lshlrev_b32 v{bb}, 16, v{misc+8}
    v_and_b32 v{bb+1}, 0xffff0000, v{misc+8}
    v_lshlrev_b32 v{bb+2}, 16, v{misc+9}
    v_and_b32 v{bb+3}, 0xffff0000, v{misc+9}
    s_and_b32 s3, s30, 1
    s_cmp_eq_u32 s3, 1
    s_cselect_b64 s[42:43], -1, 0
    v_cndmask_b32 v{t1}, v{omg+0}, v{omg+4}, s[42:43]
    v_cndmask_b32 v{t2}, v{omg+2}, v{omg+6}, s[42:43]
    """)
    for tl, tv in ((0, t1), (1, t2)):
        a = red + tl*32
        for r in range(4):
            A(f"v_fma_f32 v{a+r}, v{bb+r}, v{tv}, v{a+r}")
        A(f"v_cvt_pk_bf16_f32 v{a}, v{a}, v{a+1}")
        A(f"v_cvt_pk_bf16_f32 v{a+1}, v{a+2}, v{a+3}")
    A(f"""
    s_lshl_b32 s3, s28, 6
    s_and_b32 s4, s30, 1
    s_lshl_b32 s4, s4, 5
    s_add_u32 s3, s3, s4
    v_add_u32 v{t0}, s3, v{lo4}
    v_lshlrev_b32 v{t0}, 10, v{t0}
    s_lshr_b32 s3, s30, 1
    s_lshl_b32 s3, s3, 5
    s_lshl_b32 s4, s29, 7
    s_add_u32 s3, s3, s4
    v_lshl_add_u32 v{t1}, v{g}, 3, s3
    v_add_u32 v{t0}, v{t0}, v{t1}
    buffer_store_dwordx2 {vr(red,2)}, v{t0}, s[20:23], 0 offen
    v_add_u32 v{t0}, 0x4000, v{t0}
    buffer_store_dwordx2 {vr(red+32,2)}, v{t0}, s[20:23], 0 offen
    s_waitcnt vmcnt(0)
    """)
    A.label("K2_END")
    A("s_endpgm")
```

```python
import sys
from asmlib import *
from gen_k1 import *
from gen_k2 import *
HDR = open("gated_mix__linear_kernel_hedgehog__mixer_channel_mlp__prompt.s.ref").read().split("; Override")[0]
def kd(name, vg, sg=96):
    return f""".amdhsa_kernel {name}
  .amdhsa_next_free_vgpr {vg}
  .amdhsa_next_free_sgpr {sg}
  .amdhsa_accum_offset {vg}
  .amdhsa_group_segment_fixed_size 0
  .amdhsa_kernarg_size 104
  .amdhsa_user_sgpr_count 2
  .amdhsa_user_sgpr_kernarg_segment_ptr 1
  .amdhsa_system_sgpr_workgroup_id_x 1
.end_amdhsa_kernel
"""
def main(out):
    A = Asm()
    gen_k1(A, "k1_kernel")
    gen_k2(A, "k2_kernel")
    body = A.finish()
    txt = HDR + "; @launch kernel=k1_kernel grid=(256,1,1) block=(512,1,1) lds=163840\n; @launch kernel=k2_kernel grid=(256,1,1) block=(512,1,1) lds=163840\n"
    txt += '.amdgcn_target "amdgcn-amd-amdhsa--gfx950"\n.text\n' + body
    txt += '.section .rodata,"a"\n.p2align 6\n' + kd("k1_kernel", 256) + ".p2align 6\n" + kd("k2_kernel", 256)
    open(out, "w").write(txt)
    print("nops inserted:", A.nnops, "lines:", txt.count("\n"))
main(sys.argv[1] if len(sys.argv) > 1 else "gated_mix__linear_kernel_hedgehog__mixer_channel_mlp__prompt.s")
```
